```python
import torch

def _softmax(x, axis=-1):
    return torch.softmax(x, dim=axis)
def _gelu(x):
    return torch.nn.functional.gelu(x, approximate="tanh")
def _silu(x):
    return torch.nn.functional.silu(x)
def _sigmoid(x):
    return torch.sigmoid(x)
def _layernorm(x, axis=-1, eps=1e-5):
    m = x.mean(dim=axis, keepdim=True)
    v = x.var(dim=axis, keepdim=True, unbiased=False)
    return (x - m) / torch.sqrt(v + eps)
def _scatter_add(tgt, idx, src, axis=0):
    return tgt.clone().index_add_(axis, idx, src)
def _segment_sum(src, seg, n):
    out = torch.zeros((n,) + src.shape[1:], dtype=src.dtype)
    return out.index_add_(0, seg, src)
def _pad(x, pw):
    flat = tuple(v for pair in reversed(pw) for v in pair)
    return torch.nn.functional.pad(x, flat)

kernel_name = 'standalone__gqa_block_cached__decode'

def setup_inputs():

    _w = (lambda a: (lambda t: t.to(torch.bfloat16) if t.is_floating_point() else t)(torch.as_tensor(a)))
    B, Sq, D = 1, 1, 640
    Hq, Hkv, Sk, Dh = 32, 32, 32768, 192
    assert Hq % Hkv == 0, (Hq, Hkv)
    return {
        "x": _w((lambda *s: torch.randn(*s, dtype=torch.bfloat16) * 0.8)(B, Sq, D)),
        "k_cache": _w((lambda *s: torch.randn(*s, dtype=torch.bfloat16) * 0.8)(B, Hkv, Sk, Dh)),
        "v_cache": _w((lambda *s: torch.randn(*s, dtype=torch.bfloat16) * 0.05)(B, Hkv, Sk, Dh)),
        "wq": _w((lambda *s: torch.randn(*s, dtype=torch.bfloat16) * 0.8)(D, Hq * Dh) * (D ** -0.5)),
        "wo": _w((lambda *s: torch.randn(*s, dtype=torch.bfloat16) * 0.05)(Hq * Dh, D) * ((Hq * Dh) ** -0.5)),
    }

def reference(x, k_cache, v_cache, wq, wo):
    B, Sq, D = x.shape
    Hq, Dh = 32, 192
    Hkv = k_cache.shape[1]
    rep = Hq // Hkv
    q = (lambda x, *d: x.permute(*d))((x @ wq).reshape(B, Sq, Hq, Dh), 0, 2, 1, 3)
    k = (lambda x, n, axis: torch.repeat_interleave(x, n, dim=axis))(k_cache, rep, axis=1)
    v = (lambda x, n, axis: torch.repeat_interleave(x, n, dim=axis))(v_cache, rep, axis=1)
    scores = torch.einsum("bhqd,bhkd->bhqk", q, k) * (Dh ** -0.5)
    p = _softmax(scores, axis=-1)
    o = torch.einsum("bhqk,bhkd->bhqd", p, v)
    return (lambda x, *d: x.permute(*d))(o, 0, 2, 1, 3).reshape(B, Sq, Hq * Dh) @ wo
```

```python
import sys, struct, math, argparse

NAME = "standalone__gqa_block_cached__decode"

HEADER = """; Kernarg layout for this problem (64 bytes, ptrs only, base s[0:1]):
"""

def f32bits(x):
    return struct.unpack("<I", struct.pack("<f", x))[0]

OW, QB, ML, FINML, YP, FIN = 0, 12288, 12672, 12992, 13056, 33536
LDS = 33536 + 128
WS_ML = 655360
WS_SIZE = 655360 + 4096

sK, sV, sWQ, sWO, sX, sWS, sOUT, sDBG = 20, 24, 28, 32, 36, 40, 44, 48
sH, sSPLIT, sP, sW, sC, sCNT, sT0, sT1 = 52, 53, 54, 55, 56, 57, 58, 59
sVALID = 60
sSELLO, sSELHI = 62, 63
sT2, sT3 = 64, 65

vKV = 1
vQ = 4
vMASK = 16
vACC = 20
vA = 32
RING = 40
WREG = 136


def srd(n):
    return f"s[{n}:{n+3}]"

def vr(a, n):
    return f"v[{a}:{a+n-1}]"


class Gen:
    def __init__(self, o):
        self.o = o
        self.L = []
        self.slow = []

    def e(self, s):
        self.L.append("    " + s)

    def lab(self, s):
        self.L.append(s + ":")

    def c(self, s):
        self.L.append("    ; " + s)

    def build_srd(self, d, p, nrec):
        self.e(f"s_mov_b32 s{d}, s{p}")
        self.e(f"s_mov_b32 s{d+1}, s{p+1}")
        self.e(f"s_mov_b32 s{d+2}, {nrec}")
        self.e(f"s_mov_b32 s{d+3}, 0x20000")

    def kv_load(self, which, reg, t):
        pol = self.o.pol
        s = sK if which == "K" else sV
        off = f" offset:{t*128}" if t else ""
        self.e(f"buffer_load_dwordx4 {vr(reg,4)}, v{vKV}, {srd(s)}, 0 offen{off}{pol}")

    def unit(self, slot, wk, wv, tag):
        o = self.o
        kb = RING + slot * 24
        vb = kb + 12
        vS, vS1, vS2, vP = 36, 37, 38, 39
        vL, vNEG = 2, 3
        self.e(f"s_waitcnt vmcnt({wk})")
        for j in range(4):
            for t in range(3):
                src2 = "0" if j == 0 else f"v{vS+t}"
                self.e(f"v_dot2_f32_bf16 v{vS+t}, v{kb+4*t+j}, v{vQ+4*t+j}, {src2}")
        for t in range(3):
            self.kv_load("K", kb + 4 * t, t)
        self.e(f"v_add_f32 v{vS}, v{vS}, v{vS1}")
        self.e(f"v_add_f32 v{vS}, v{vS}, v{vS2}")
        self.e("s_nop 1")
        self.e(f"v_add_f32_dpp v{vS}, v{vS}, v{vS} quad_perm:[1,0,3,2] row_mask:0xf bank_mask:0xf")
        self.e("s_nop 1")
        self.e(f"v_add_f32_dpp v{vS}, v{vS}, v{vS} quad_perm:[2,3,0,1] row_mask:0xf bank_mask:0xf")
        self.e("s_nop 1")
        self.e(f"v_add_f32_dpp v{vS}, v{vS}, v{vS} row_half_mirror row_mask:0xf bank_mask:0xf")
        self.e(f"v_fma_f32 v{vP}, v{vS}, s{sC}, v{vNEG}")
        self.e(f"v_cmp_lt_f32 vcc, 0, v{vP}")
        self.e(f"s_cbranch_vccnz SLOW_{tag}")
        self.lab(f"BACK_{tag}")
        self.e(f"v_exp_f32 v{vP}, v{vP}")
        self.e("s_nop 0")
        self.e(f"v_cvt_pk_bf16_f32 v{vS1}, v{vP}, v{vP}")
        self.e(f"v_add_f32 v{vL}, v{vL}, v{vP}")
        for r in range(4):
            self.e(f"v_and_b32 v{vA+r}, v{vS1}, v{vMASK+r}")
        self.e(f"s_waitcnt vmcnt({wv})")
        self.e("s_nop 0")
        for t in range(3):
            self.e(f"v_mfma_f32_16x16x32_bf16 {vr(vACC+4*t,4)}, {vr(vA,4)}, {vr(vb+4*t,4)}, {vr(vACC+4*t,4)}")
        for t in range(3):
            self.kv_load("V", vb + 4 * t, t)
        self.e(f"v_add_u32 v{vKV}, {o.ustride}, v{vKV}")
        S = self.slow
        S.append(f"SLOW_{tag}:")
        def a(x): S.append("    " + x)
        a(f"v_mul_f32 v{vS1}, s{sC}, v{vS}")
        a("s_nop 1")
        a(f"v_max_f32_dpp v{vS1}, v{vS1}, v{vS1} row_ror:8 row_mask:0xf bank_mask:0xf")
        a("s_nop 1")
        a(f"v_max_f32_dpp v{vS1}, v{vS1}, v{vS1} row_bcast:15 row_mask:0xa bank_mask:0xf")
        a("s_nop 1")
        a(f"v_max_f32_dpp v{vS1}, v{vS1}, v{vS1} row_bcast:31 row_mask:0xc bank_mask:0xf")
        a("s_nop 1")
        a(f"v_readlane_b32 s{sT0}, v{vS1}, 63")
        a("s_nop 1")
        a(f"v_min_f32_e64 v{vS1}, -s{sT0}, v{vNEG}")
        a(f"v_sub_f32 v{vS2}, v{vS1}, v{vNEG}")
        a(f"v_exp_f32 v{vS2}, v{vS2}")
        a(f"v_mov_b32 v{vNEG}, v{vS1}")
        for r in range(12):
            a(f"v_mul_f32 v{vACC+r}, v{vACC+r}, v{vS2}")
        a(f"v_mul_f32 v{vL}, v{vL}, v{vS2}")
        a(f"v_fma_f32 v{vP}, v{vS}, s{sC}, v{vNEG}")
        a(f"s_branch BACK_{tag}")

    def slot_offset(self, vdst, vtmp):
        self.e(f"s_mul_i32 s{sT0}, s{sP}, 2560")
        self.e(f"s_lshl_b32 s{sT1}, s{sP}, 4")
        self.e(f"s_add_u32 s{sT1}, s{sT1}, {WS_ML}")
        self.e(f"v_lshlrev_b32 v{vdst}, 4, v0")
        self.e(f"v_add_u32 v{vdst}, s{sT0}, v{vdst}")
        self.e(f"v_mov_b32 v{vtmp}, s{sT1}")
        self.e(f"v_cmp_eq_u32 vcc, 0xa0, v0")
        self.e("s_nop 1")
        self.e(f"v_cndmask_b32 v{vdst}, v{vdst}, v{vtmp}, vcc")
        self.e(f"v_bfrev_b32 v{vtmp}, 1")
        self.e(f"v_cmp_lt_u32 vcc, 0xa0, v0")
        self.e("s_nop 1")
        self.e(f"v_cndmask_b32 v{vdst}, v{vdst}, v{vtmp}, vcc")

    def consumer(self, poll):
        o = self.o
        vY, vM = 12, 13
        self.e(f"v_and_b32 v14, 0xff, v0")
        self.e(f"v_lshrrev_b32 v15, 8, v0")
        self.e(f"s_movk_i32 s{sT0}, 2560")
        self.e(f"v_mul_lo_u32 v{vY}, v14, s{sT0}")
        self.e(f"v_lshlrev_b32 v15, 4, v15")
        self.e(f"s_lshl_b32 s{sT1}, s2, 5")
        self.e(f"v_add3_u32 v{vY}, v{vY}, v15, s{sT1}")
        self.e(f"v_lshlrev_b32 v{vM}, 4, v14")
        self.e(f"v_add_u32 v{vM}, {WS_ML}, v{vM}")
        if poll:
            self.e(f"s_mov_b32 s{sCNT}, 0")
            self.e("s_waitcnt vmcnt(0)")
            self.lab("CNT_CHECK")
            self.e(f"v_readfirstlane_b32 s{sT0}, v44")
            self.e(f"s_and_b32 s{sT0}, s{sT0}, 255")
            self.e("s_cbranch_scc0 CNT_OK")
            self.e(f"s_add_u32 s{sCNT}, s{sCNT}, 1")
            self.e(f"s_cmp_ge_u32 s{sCNT}, 0x8000")
            self.e("s_cbranch_scc1 CNT_OK")
            self.e(f"v_mov_b32 v10, 0")
            self.e(f"buffer_load_dword v44, v10, {srd(sDBG)}, 0 offen sc1")
            self.e("s_waitcnt vmcnt(0)")
            self.e("s_branch CNT_CHECK")
            self.lab("CNT_OK")
            self.e(f"s_mov_b32 s{sCNT}, 0")
            self.lab("POLL")
            self.e(f"buffer_load_dwordx4 v[4:7], v{vY}, {srd(sWS)}, 0 offen sc1")
            self.e(f"buffer_load_dwordx2 v[8:9], v{vM}, {srd(sWS)}, 0 offen sc1")
            self.e(f"s_add_u32 s{sCNT}, s{sCNT}, 1")
            self.e("s_waitcnt vmcnt(0)")
            self.e("v_max3_u32 v10, v4, v5, v6")
            self.e("v_max3_u32 v10, v7, v8, v10")
            self.e("v_max_u32 v10, v9, v10")
            self.e("v_cmp_eq_u32 vcc, -1, v10")
            self.e("s_mov_b64 exec, vcc")
            self.e("s_cbranch_execz POLL_DONE")
            if o.sleep:
                self.e(f"s_sleep {o.sleep}")
            self.e(f"s_cmp_lt_u32 s{sCNT}, 0x8000")
            self.e("s_cbranch_scc1 POLL")
            self.lab("POLL_DONE")
            self.e("s_mov_b64 exec, -1")
        else:
            self.e(f"buffer_load_dwordx4 v[4:7], v{vY}, {srd(sWS)}, 0 offen")
            self.e(f"buffer_load_dwordx2 v[8:9], v{vM}, {srd(sWS)}, 0 offen")
            self.e("s_waitcnt vmcnt(0)")
        dp = ["quad_perm:[1,0,3,2]", "quad_perm:[2,3,0,1]", "row_half_mirror"]
        self.e("v_mov_b32 v10, v8")
        for d in dp:
            self.e("s_nop 1")
            self.e(f"v_min_f32_dpp v10, v10, v10 {d} row_mask:0xf bank_mask:0xf")
        self.e("v_sub_f32 v10, v10, v8")
        self.e("v_exp_f32 v10, v10")
        self.e("s_nop 0")
        self.e("v_mul_f32 v9, v9, v10")
        for d in dp:
            self.e("s_nop 1")
            self.e(f"v_add_f32_dpp v9, v9, v9 {d} row_mask:0xf bank_mask:0xf")
        self.e("v_rcp_f32 v11, v9")
        self.e("s_nop 0")
        self.e("v_fma_f32 v14, -v9, v11, 1.0")
        self.e("v_fma_f32 v11, v14, v11, v11")
        self.e("v_mul_f32 v10, v10, v11")
        for r in range(4):
            self.e(f"v_mul_f32 v{4+r}, v{4+r}, v10")
        steps = ["quad_perm:[1,0,3,2] row_mask:0xf", "quad_perm:[2,3,0,1] row_mask:0xf",
                 "row_half_mirror row_mask:0xf", "row_mirror row_mask:0xf",
                 "row_bcast:15 row_mask:0xa", "row_bcast:31 row_mask:0xc"]
        for d in steps:
            for r in range(4):
                self.e(f"v_add_f32_dpp v{4+r}, v{4+r}, v{4+r} {d} bank_mask:0xf")
        self.e(f"s_lshl_b32 s{sT0}, s{sW}, 4")
        self.e(f"s_add_u32 s{sT0}, s{sT0}, {FIN}")
        self.e(f"v_mov_b32 v10, s{sT0}")
        self.e("s_mov_b32 exec_lo, 0")
        self.e("s_mov_b32 exec_hi, 0x80000000")
        self.e("ds_write_b128 v10, v[4:7]")
        self.e("s_mov_b64 exec, -1")
        self.e("s_waitcnt lgkmcnt(0)")
        self.e("s_barrier")
        self.e(f"s_cmp_lg_u32 s{sW}, 0")
        self.e("s_cbranch_scc1 END" + ("" if poll else "2"))
        self.e("v_lshrrev_b32 v10, 2, v0")
        self.e("v_lshlrev_b32 v10, 6, v10")
        self.e("v_and_b32 v11, 3, v0")
        self.e("v_lshlrev_b32 v11, 2, v11")
        self.e("v_add_u32 v10, v10, v11")
        self.e("v_lshlrev_b32 v12, 1, v0")
        self.e(f"s_lshl_b32 s{sT1}, s2, 4")
        self.e(f"v_add_u32 v12, s{sT1}, v12")
        self.e("s_mov_b64 exec, 0xff")
        for k in range(4):
            self.e(f"ds_read_b32 v{4+k}, v10 offset:{FIN + k*16}")
        self.e("s_waitcnt lgkmcnt(0)")
        self.e("v_add_f32 v4, v4, v5")
        self.e("v_add_f32 v6, v6, v7")
        self.e("v_add_f32 v4, v4, v6")
        self.e("v_cvt_pk_bf16_f32 v4, v4, v4")
        self.e(f"buffer_store_short v4, v12, {srd(sOUT)}, 0 offen")

    def main_kernel(self):
        o = self.o
        R = o.R
        poll = o.tail == "poll"
        e = self.e
        e("s_cmp_ge_u32 s2, 256")
        e("s_cbranch_scc1 END")
        e("s_load_dwordx16 s[4:19], s[0:1], 0")
        e(f"s_and_b32 s{sH}, s2, 7")
        e(f"s_lshl_b32 s{sH}, s{sH}, 2")
        e(f"s_lshr_b32 s{sSPLIT}, s2, 3")
        e(f"s_and_b32 s{sSPLIT}, s{sSPLIT}, 3")
        e(f"s_add_u32 s{sH}, s{sH}, s{sSPLIT}")
        e(f"s_lshr_b32 s{sSPLIT}, s2, 5")
        e(f"s_lshl_b32 s{sP}, s{sH}, 3")
        e(f"s_add_u32 s{sP}, s{sP}, s{sSPLIT}")
        e("v_lshrrev_b32 v9, 6, v0")
        e("v_and_b32 v10, 7, v0")
        e(f"v_readfirstlane_b32 s{sW}, v9")
        e("v_bfe_u32 v11, v0, 3, 3")
        e("v_lshlrev_b32 v12, 4, v10")
        e(f"s_mul_i32 s{sT0}, s{sW}, 160")
        e("v_mul_u32_u24 v3, 20, v11")
        e(f"v_add_u32 v3, s{sT0}, v3")
        e(f"s_mul_i32 s{sT0}, s{sW}, {80*12288}")
        e(f"s_mul_i32 s{sT1}, s{sH}, 384")
        e(f"s_add_u32 s{sT0}, s{sT0}, s{sT1}")
        e(f"s_mov_b32 s{sT1}, {10*12288}")
        e(f"v_mul_lo_u32 v2, v11, s{sT1}")
        e(f"v_add3_u32 v2, v2, v12, s{sT0}")
        e(f"s_mul_i32 s{sT0}, s{sW}, {o.wstride}")
        e(f"v_mul_u32_u24 v{vKV}, 0x180, v11")
        e(f"v_add3_u32 v{vKV}, v{vKV}, v12, s{sT0}")
        e(f"s_mul_i32 s{sT2}, s{sP}, 1572864")
        e("s_waitcnt lgkmcnt(0)")
        self.build_srd(sX, 4, 1280)
        self.build_srd(sWQ, 10, 640 * 12288)
        e(f"buffer_load_dwordx4 v[4:7], v3, {srd(sX)}, 0 offen")
        e(f"buffer_load_dword v8, v3, {srd(sX)}, 0 offen offset:16")
        e(f"s_mov_b32 s{sT3}, 0")
        for g in range(10):
            for t in range(3):
                off = f" offset:{t*128}" if t else ""
                e(f"buffer_load_dwordx4 {vr(WREG+12*g+4*t,4)}, v2, {srd(sWQ)}, s{sT3} offen{off}{o.wpol}")
            if g < 9:
                e(f"s_add_u32 s{sT3}, s{sT3}, 12288")
        for d, p in ((sK, 6), (sV, 8)):
            e(f"s_add_u32 s{d}, s{p}, s{sT2}")
            e(f"s_addc_u32 s{d+1}, s{p+1}, 0")
            e(f"s_mov_b32 s{d+2}, 1572864")
            e(f"s_mov_b32 s{d+3}, 0x20000")
        self.build_srd(sWS, 18, WS_SIZE)
        nclear = 0
        if poll:
            self.slot_offset(13, 14)
            for r in range(4):
                e(f"v_mov_b32 v{36+r}, -1")
            e(f"buffer_store_dwordx4 v[36:39], v13, {srd(sWS)}, 0 offen sc1")
            nclear = 1
        for j in range(R):
            for t in range(3):
                self.kv_load("K", RING + 24 * j + 4 * t, t)
            for t in range(3):
                self.kv_load("V", RING + 24 * j + 12 + 4 * t, t)
            e(f"v_add_u32 v{vKV}, {o.ustride}, v{vKV}")
        self.build_srd(sWO, 12, 6144 * 1280)
        self.build_srd(sOUT, 14, 1280)
        self.build_srd(sDBG, 16, 256)
        e(f"s_mov_b32 s{sC}, {f32bits(192 ** -0.5 * math.log2(math.e)):#x}")
        e(f"s_mov_b32 s{sVALID}, 0x00ff00ff")
        e(f"s_mov_b32 s{sVALID+1}, 0xff00ff00")
        e(f"s_mov_b32 s{sSELLO}, 0x01000100")
        e(f"s_mov_b32 s{sSELHI}, 0x03020302")
        e("v_and_b32 v13, 1, v10")
        e("v_lshlrev_b32 v13, 4, v13")
        e("v_mov_b32 v14, 0xffff")
        e("v_lshlrev_b32 v13, v13, v14")
        e("v_lshrrev_b32 v14, 1, v10")
        for r in range(4):
            e(f"v_cmp_eq_u32 vcc, {r}, v14")
            e("s_nop 1")
            e(f"v_cndmask_b32 v{vMASK+r}, 0, v13, vcc")
        e(f"s_and_b32 s{sT0}, s{sW}, 3")
        e(f"s_mul_i32 s{sT0}, s{sT0}, 48")
        e(f"s_mul_i32 s{sT1}, s{sH}, 192")
        e(f"s_add_u32 s{sT0}, s{sT0}, s{sT1}")
        e(f"s_mul_i32 s{sT0}, s{sT0}, 1280")
        e(f"s_lshr_b32 s{sT1}, s{sW}, 2")
        e(f"s_mul_i32 s{sT1}, s{sT1}, 640")
        e(f"s_add_u32 s{sT0}, s{sT0}, s{sT1}")
        e(f"v_mul_u32_u24 v2, {6*1280:#x}, v11")
        e(f"v_add3_u32 v2, v2, v12, s{sT0}")
        self.ow_addr(3, 13)
        ring_n = 6 * R
        for g in range(10):
            A = vA if g % 2 == 0 else 12
            e(f"s_waitcnt vmcnt({ring_n + nclear + 3*(9-g)})")
            e(f"v_perm_b32 v9, v{4+g//2}, v{4+g//2}, s{sSELLO if g%2==0 else sSELHI}")
            for r in range(4):
                e(f"v_and_b32 v{A+r}, v9, v{vMASK+r}")
            e("s_nop 1")
            for t in range(3):
                C = "0" if g == 0 else vr(vACC+4*t, 4)
                e(f"v_mfma_f32_16x16x32_bf16 {vr(vACC+4*t,4)}, {vr(A,4)}, {vr(WREG+12*g+4*t,4)}, {C}")
        e(f"s_movk_i32 s{sT3}, 3840")
        for g in range(6):
            for c in range(5):
                off = (g % 3) * 1280 + c * 128
                so = "0" if g < 3 else f"s{sT3}"
                offs = f" offset:{off}" if off else ""
                e(f"buffer_load_dwordx4 {vr(WREG+4*(g*5+c),4)}, v2, {srd(sWO)}, {so} offen{offs}{o.wpol}")
        e(f"s_mov_b64 exec, s[{sVALID}:{sVALID+1}]")
        for t in range(3):
            e(f"ds_write_b128 v3, {vr(vACC+4*t,4)} offset:{OW + t*256}")
        e("s_mov_b64 exec, -1")
        if poll:
            e(f"s_waitcnt vmcnt({ring_n + 30}) lgkmcnt(0)")
        else:
            e("s_waitcnt lgkmcnt(0)")
        e("s_barrier")
        natom = 0
        if poll:
            e("v_bfrev_b32 v9, 1")
            e("v_cmp_eq_u32 vcc, 0, v0")
            e("v_mov_b32 v10, 1")
            e("s_nop 0")
            e("v_cndmask_b32 v9, v9, v0, vcc")
            e(f"buffer_atomic_add v10, v9, {srd(sDBG)}, 0 offen sc1")
            natom = 1
        e(f"s_cmp_ge_u32 s{sW}, 3")
        e("s_cbranch_scc1 QSKIP")
        e("v_lshlrev_b32 v4, 2, v0")
        for k in range(8):
            e(f"ds_read2st64_b32 {vr(20+2*k,2)}, v4 offset0:{6*k} offset1:{6*k+3}")
        e("v_lshlrev_b32 v5, 1, v0")
        e("s_waitcnt lgkmcnt(0)")
        for st in (8, 4, 2, 1):
            for k in range(st):
                e(f"v_add_f32 v{20+k}, v{20+k}, v{20+k+st}")
        e("v_cvt_pk_bf16_f32 v20, v20, v20")
        e(f"ds_write_b16 v5, v20 offset:{QB}")
        e("s_waitcnt lgkmcnt(0)")
        self.lab("QSKIP")
        e("s_barrier")
        e("v_and_b32 v36, 7, v0")
        e("v_lshlrev_b32 v36, 4, v36")
        for t in range(3):
            e(f"ds_read_b128 {vr(vQ+4*t,4)}, v36 offset:{QB + t*128}")
        for r in range(12):
            e(f"v_mov_b32 v{vACC+r}, 0")
        e("v_mov_b32 v2, 0")
        e("v_mov_b32 v3, 0x7f800000")
        e("s_waitcnt lgkmcnt(0)")
        w1 = ring_n - 3 + 30 + natom
        for j in range(R):
            self.unit(j, w1, w1, f"P{j}")
        npass = 64 // R
        assert npass * R == 64
        e(f"s_mov_b32 s{sCNT}, {npass-1}")
        self.lab("LOOP")
        for j in range(R):
            self.unit(j, ring_n - 3, ring_n - 3, f"L{j}")
        e(f"s_sub_u32 s{sCNT}, s{sCNT}, 1")
        e(f"s_cmp_lg_u32 s{sCNT}, 0")
        e("s_cbranch_scc1 LOOP")
        if poll:
            e("v_mov_b32 v10, 0")
            e(f"buffer_load_dword v44, v10, {srd(sDBG)}, 0 offen sc1")
        self.ow_addr(36, 37)
        e("v_lshrrev_b32 v37, 3, v0")
        e("v_lshlrev_b32 v37, 2, v37")
        e(f"s_lshl_b32 s{sT0}, s{sW}, 2")
        e(f"v_mov_b32 v38, s{sT0}")
        e(f"s_mov_b64 exec, s[{sVALID}:{sVALID+1}]")
        for t in range(3):
            e(f"ds_write_b128 v36, {vr(vACC+4*t,4)} offset:{OW + t*256}")
        e("s_mov_b32 exec_lo, 0x01010101")
        e("s_mov_b32 exec_hi, 0x01010101")
        e(f"ds_write_b32 v37, v2 offset:{ML}")
        e("s_mov_b64 exec, 1")
        e(f"ds_write_b32 v38, v3 offset:{ML+256}")
        e("s_mov_b64 exec, -1")
        e("s_waitcnt lgkmcnt(0)")
        e("s_barrier")
        e(f"s_cmp_gt_u32 s{sW}, 3")
        e("s_cbranch_scc1 CSKIP")
        e("v_mov_b32 v36, 0")
        e(f"ds_read_b128 v[4:7], v36 offset:{ML+256}")
        e(f"ds_read_b128 v[12:15], v36 offset:{ML+272}")
        e(f"s_cmp_eq_u32 s{sW}, 3")
        e("s_cbranch_scc1 CW3")
        e("v_lshlrev_b32 v36, 2, v0")
        for k in range(8):
            e(f"ds_read2st64_b32 {vr(20+2*k,2)}, v36 offset0:{6*k} offset1:{6*k+3}")
        e("v_lshlrev_b32 v37, 1, v0")
        e("s_waitcnt lgkmcnt(8)")
        mm = [4, 5, 6, 7, 12, 13, 14, 15]
        e("v_min3_f32 v38, v4, v5, v6")
        e("v_min3_f32 v38, v7, v12, v38")
        e("v_min3_f32 v38, v13, v14, v38")
        e("v_min_f32 v38, v15, v38")
        for k in range(8):
            e(f"v_sub_f32 v{mm[k]}, v38, v{mm[k]}")
        for k in range(8):
            e(f"v_exp_f32 v{mm[k]}, v{mm[k]}")
        e("s_waitcnt lgkmcnt(0)")
        for k in range(8):
            e(f"v_add_f32 v{20+2*k}, v{20+2*k}, v{21+2*k}")
        e(f"v_mul_f32 v20, v20, v{mm[0]}")
        e(f"v_mul_f32 v22, v22, v{mm[1]}")
        for k in range(2, 8):
            e(f"v_fma_f32 v{20+2*(k%2)}, v{20+2*k}, v{mm[k]}, v{20+2*(k%2)}")
        e("v_add_f32 v20, v20, v22")
        e("v_cvt_pk_bf16_f32 v20, v20, v20")
        e(f"ds_write_b16 v37, v20 offset:{QB}")
        e("s_waitcnt lgkmcnt(0)")
        e("s_branch CSKIP")
        self.lab("CW3")
        e("v_and_b32 v36, 63, v0")
        e("v_lshrrev_b32 v37, 3, v36")
        e("v_lshlrev_b32 v36, 2, v36")
        e("v_lshlrev_b32 v37, 2, v37")
        e(f"ds_read_b32 v20, v36 offset:{ML}")
        e(f"ds_read_b32 v21, v37 offset:{ML+256}")
        e("s_waitcnt lgkmcnt(0)")
        e("v_min3_f32 v38, v4, v5, v6")
        e("v_min3_f32 v38, v7, v12, v38")
        e("v_min3_f32 v38, v13, v14, v38")
        e("v_min_f32 v38, v15, v38")
        e("v_sub_f32 v21, v38, v21")
        e("v_exp_f32 v21, v21")
        e("s_nop 0")
        e("v_mul_f32 v39, v20, v21")
        steps = ["quad_perm:[1,0,3,2] row_mask:0xf", "quad_perm:[2,3,0,1] row_mask:0xf",
                 "row_half_mirror row_mask:0xf", "row_mirror row_mask:0xf",
                 "row_bcast:15 row_mask:0xa", "row_bcast:31 row_mask:0xc"]
        for d in steps:
            e("s_nop 1")
            e(f"v_add_f32_dpp v39, v39, v39 {d} bank_mask:0xf")
        e("v_mov_b32 v36, 0")
        e("s_mov_b32 exec_lo, 0")
        e("s_mov_b32 exec_hi, 0x80000000")
        e(f"ds_write_b64 v36, v[38:39] offset:{FINML}")
        e("s_mov_b64 exec, -1")
        e("s_waitcnt lgkmcnt(0)")
        self.lab("CSKIP")
        e("s_barrier")
        e("v_bfe_u32 v36, v0, 3, 3")
        e("v_mul_u32_u24 v36, 12, v36")
        e(f"s_and_b32 s{sT0}, s{sW}, 3")
        e(f"s_mul_i32 s{sT1}, s{sT0}, 96")
        e(f"v_add_u32 v36, s{sT1}, v36")
        e(f"ds_read_b32 v4, v36 offset:{QB}")
        e(f"ds_read_b32 v5, v36 offset:{QB+4}")
        e(f"ds_read_b32 v6, v36 offset:{QB+8}")
        e(f"s_mul_i32 s{sT0}, s{sT0}, 5120")
        e(f"s_lshr_b32 s{sT1}, s{sW}, 2")
        e(f"s_mul_i32 s{sT1}, s{sT1}, 1280")
        e(f"s_add_u32 s{sT0}, s{sT0}, s{sT1}")
        e("v_bfe_u32 v3, v0, 5, 1")
        e("v_mul_u32_u24 v3, 0xa00, v3")
        e("v_and_b32 v2, 7, v0")
        e("v_lshlrev_b32 v2, 5, v2")
        e(f"v_add3_u32 v3, v3, v2, s{sT0}")
        e("v_bfe_u32 v2, v0, 4, 1")
        e("v_lshlrev_b32 v2, 4, v2")
        e("v_add_u32 v3, v3, v2")
        D = [20, 24, 28, 8, 12]
        e("s_waitcnt lgkmcnt(0)")
        for g in range(6):
            A = vA if g % 2 == 0 else 36
            e(f"v_perm_b32 v7, v{4+g//2}, v{4+g//2}, s{sSELLO if g%2==0 else sSELHI}")
            for r in range(4):
                e(f"v_and_b32 v{A+r}, v7, v{vMASK+r}")
            e("s_nop 1")
            for c in range(5):
                C = "0" if g == 0 else vr(D[c], 4)
                e(f"v_mfma_f32_16x16x32_bf16 {vr(D[c],4)}, {vr(A,4)}, {vr(WREG+4*(g*5+c),4)}, {C}")
        e(f"s_mov_b64 exec, s[{sVALID}:{sVALID+1}]")
        e("s_nop 7")
        for c in range(5):
            e(f"ds_write_b128 v3, {vr(D[c],4)} offset:{YP + c*256}")
        e("s_mov_b64 exec, -1")
        e("s_waitcnt lgkmcnt(0)")
        e("s_barrier")
        e(f"s_cmp_ge_u32 s{sW}, 3")
        e("s_cbranch_scc1 YSKIP")
        e("v_min_u32 v2, 0x9f, v0")
        e("v_lshlrev_b32 v2, 4, v2")
        for k in range(8):
            e(f"ds_read_b128 {vr(WREG+4*k,4)}, v2 offset:{YP + k*2560}")
        e("v_mov_b32 v3, 0")
        e(f"ds_read_b64 v[4:5], v3 offset:{FINML}")
        self.slot_offset(6, 7)
        e("s_waitcnt lgkmcnt(0)")
        for st in (4, 2, 1):
            for k in range(st):
                for r in range(4):
                    e(f"v_add_f32 v{WREG+4*k+r}, v{WREG+4*k+r}, v{WREG+4*(k+st)+r}")
        e("v_cmp_eq_u32 vcc, 0xa0, v0")
        e("s_nop 1")
        e(f"v_cndmask_b32 v{WREG}, v{WREG}, v4, vcc")
        e(f"v_cndmask_b32 v{WREG+1}, v{WREG+1}, v5, vcc")
        if poll:
            for r in range(4):
                e(f"v_min_u32 v{WREG+r}, -2, v{WREG+r}")
        e(f"buffer_store_dwordx4 {vr(WREG,4)}, v6, {srd(sWS)}, 0 offen{' sc1' if poll else ''}")
        self.lab("YSKIP")
        if poll:
            e("s_cmp_ge_u32 s2, 80")
            e("s_cbranch_scc1 END")
            self.consumer(True)
        self.lab("END")
        e("s_endpgm")
        self.L.extend(self.slow)

    def ow_addr(self, vd, vt):
        e = self.e
        e(f"v_lshrrev_b32 v{vd}, 5, v0")
        e(f"v_mul_u32_u24 v{vd}, 0x300, v{vd}")
        e(f"v_and_b32 v{vt}, 7, v0")
        e(f"v_lshlrev_b32 v{vt}, 5, v{vt}")
        e(f"v_add_u32 v{vd}, v{vd}, v{vt}")
        e(f"v_bfe_u32 v{vt}, v0, 4, 1")
        e(f"v_lshlrev_b32 v{vt}, 4, v{vt}")
        e(f"v_add_u32 v{vd}, v{vd}, v{vt}")

    def comb_kernel(self):
        e = self.e
        e("s_cmp_ge_u32 s2, 80")
        e("s_cbranch_scc1 END2")
        e("s_load_dwordx16 s[4:19], s[0:1], 0")
        e("v_lshrrev_b32 v9, 6, v0")
        e("s_nop 0")
        e(f"v_readfirstlane_b32 s{sW}, v9")
        e("s_waitcnt lgkmcnt(0)")
        self.build_srd(sWS, 18, WS_SIZE)
        self.build_srd(sOUT, 14, 1280)
        self.consumer(False)
        self.lab("END2")
        e("s_endpgm")

    def desc(self, name, vg):
        return f""".amdhsa_kernel {name}
  .amdhsa_next_free_vgpr {vg}
  .amdhsa_next_free_sgpr 80
  .amdhsa_accum_offset {vg}
  .amdhsa_group_segment_fixed_size 0
  .amdhsa_kernarg_size 64
  .amdhsa_user_sgpr_count 2
  .amdhsa_user_sgpr_kernarg_segment_ptr 1
  .amdhsa_system_sgpr_workgroup_id_x 1
  .amdhsa_float_denorm_mode_32 3
.end_amdhsa_kernel
"""

    def build(self):
        o = self.o
        k1 = NAME + "_kernel"
        k2 = "gqa_combine_kernel"
        out = HEADER
        if o.tail == "poll":
            out += f"; @launch grid=(256,1,1) block=(512,1,1) lds={LDS}\n"
        else:
            out += f"; @launch kernel={k1} grid=(256,1,1) block=(512,1,1) lds={LDS}\n"
            out += f"; @launch kernel={k2} grid=(80,1,1) block=(512,1,1) lds={LDS}\n"
        out += '.amdgcn_target "amdgcn-amd-amdhsa--gfx950"\n.text\n'
        out += f".globl {k1}\n.p2align 8\n.type {k1},@function\n{k1}:\n"
        self.main_kernel()
        out += "\n".join(self.L) + "\n"
        if o.tail != "poll":
            self.L = []
            self.comb_kernel()
            out += f".globl {k2}\n.p2align 8\n.type {k2},@function\n{k2}:\n"
            out += "\n".join(self.L) + "\n"
        out += '.section .rodata,"a"\n.p2align 6\n'
        out += self.desc(k1, 256)
        if o.tail != "poll":
            out += ".p2align 6\n" + self.desc(k2, 32)
        return out


def main():
    ap = argparse.ArgumentParser()
    ap.add_argument("-o", default="cdna_kernels/" + NAME + ".s")
    ap.add_argument("--R", type=int, default=4)
    ap.add_argument("--pol", default="nt")
    ap.add_argument("--wpol", default="")
    ap.add_argument("--tail", default="2k")
    ap.add_argument("--contig", action="store_true")
    ap.add_argument("--sleep", type=int, default=0)
    o = ap.parse_args()
    o.pol = (" " + o.pol.replace("+", " ")) if o.pol else ""
    o.wpol = (" " + o.wpol.replace("+", " ")) if o.wpol else ""
    if o.contig:
        o.wstride, o.ustride = 64 * 3072, 3072
    else:
        o.wstride, o.ustride = 3072, 8 * 3072
    open(o.o, "w").write(Gen(o).build())

main()
```

```python
import sys, struct, math, argparse

NAME = "standalone__gqa_block_cached__decode"

HEADER = """; Kernarg layout for this problem (64 bytes, ptrs only, base s[0:1]):
"""

def f32bits(x):
    return struct.unpack("<I", struct.pack("<f", x))[0]

QB = 0
LDS_TS = 512
BLK = 6144
B_Y, B_O, B_ML, B_CNT = 0, 2560, 5632, 5760
WS_QX = 0x180000
WS_EPOCH = 0x1E0000
WS_CNT = 0x1E1000
WS_SIZE = 0x200000
WS_TS = 0x200000
WS_ST = 0x210000
TAGC = 0x9e3779b9
HEADB = 12582912
CH = 12288

sK, sV, sWQ, sWO, sX, sWS, sOUT, sDBG = 20, 24, 28, 32, 36, 40, 44, 48
sH, sSPLIT, sP, sW, sC, sCNT, sT0, sT1 = 52, 53, 54, 55, 56, 57, 58, 59
sOFF, sCOFF = 60, 61
sSELLO, sSELHI = 62, 63
sT2, sT3 = 64, 65
sBASE = 78
sTK = 79
sCP = 96
sPF = 98
sLEFT, sSZ, sGRP = 28, 29, 30

vKV = 1
vQ = 4
vMASK = 16
vACC = 20
vA = 32
RING = 40
WREG = 136
vTICK, vST1, vST2, vTS = 232, 233, 234, 235


def srd(n):
    return f"s[{n}:{n+3}]"

def vr(a, n):
    return f"v[{a}:{a+n-1}]"

ALL16 = ["quad_perm:[1,0,3,2]", "quad_perm:[2,3,0,1]", "row_half_mirror", "row_mirror"]

class Gen:
    def __init__(self, o):
        self.o = o
        self.L = []
        self.slow = []

    def e(self, s):
        self.L.append("    " + s)

    def lab(self, s):
        self.L.append(s + ":")

    def build_srd(self, d, p, nrec):
        self.e(f"s_mov_b32 s{d}, s{p}")
        self.e(f"s_mov_b32 s{d+1}, s{p+1}")
        self.e(f"s_mov_b32 s{d+2}, {nrec}")
        self.e(f"s_mov_b32 s{d+3}, 0x20000")

    def kv_load(self, which, reg, t):
        pol = self.o.pol
        s = sK if which == "K" else sV
        off = f" offset:{t*128}" if t else ""
        self.e(f"buffer_load_dwordx4 {vr(reg,4)}, v{vKV}, {srd(s)}, s{sOFF} offen{off}{pol}")

    def unit(self, slot, wk, wv, tag, refill=True):
        o = self.o
        kb = RING + slot * 24
        vb = kb + 12
        vS, vS1, vS2, vP = 36, 37, 38, 39
        vL, vNEG = 2, 3
        self.e(f"s_waitcnt vmcnt({wk})")
        for j in range(4):
            for t in range(3):
                src2 = "0" if j == 0 else f"v{vS+t}"
                self.e(f"v_dot2_f32_bf16 v{vS+t}, v{kb+4*t+j}, v{vQ+4*t+j}, {src2}")
        if refill:
            for t in range(3):
                self.kv_load("K", kb + 4 * t, t)
        else:
            self.e("s_nop 2")
        self.e(f"v_add_f32 v{vS}, v{vS}, v{vS1}")
        self.e(f"v_add_f32 v{vS}, v{vS}, v{vS2}")
        self.e("s_nop 1")
        self.e(f"v_add_f32_dpp v{vS}, v{vS}, v{vS} quad_perm:[1,0,3,2] row_mask:0xf bank_mask:0xf")
        self.e("s_nop 1")
        self.e(f"v_add_f32_dpp v{vS}, v{vS}, v{vS} quad_perm:[2,3,0,1] row_mask:0xf bank_mask:0xf")
        self.e("s_nop 1")
        self.e(f"v_add_f32_dpp v{vS}, v{vS}, v{vS} row_half_mirror row_mask:0xf bank_mask:0xf")
        self.e(f"v_fma_f32 v{vP}, v{vS}, s{sC}, v{vNEG}")
        self.e(f"v_cmp_lt_f32 vcc, 0, v{vP}")
        self.e(f"s_cbranch_vccnz SLOW_{tag}")
        self.lab(f"BACK_{tag}")
        self.e(f"v_exp_f32 v{vP}, v{vP}")
        self.e("s_nop 0")
        self.e(f"v_cvt_pk_bf16_f32 v{vS1}, v{vP}, v{vP}")
        self.e(f"v_add_f32 v{vL}, v{vL}, v{vP}")
        for r in range(4):
            self.e(f"v_and_b32 v{vA+r}, v{vS1}, v{vMASK+r}")
        self.e(f"s_waitcnt vmcnt({wv})")
        self.e("s_nop 0")
        for t in range(3):
            self.e(f"v_mfma_f32_16x16x32_bf16 {vr(vACC+4*t,4)}, {vr(vA,4)}, {vr(vb+4*t,4)}, {vr(vACC+4*t,4)}")
        if refill:
            for t in range(3):
                self.kv_load("V", vb + 4 * t, t)
            self.e(f"s_add_u32 s{sOFF}, s{sOFF}, 3072")
        S = self.slow
        S.append(f"SLOW_{tag}:")
        def a(x): S.append("    " + x)
        a(f"v_mul_f32 v{vS1}, s{sC}, v{vS}")
        a("s_nop 1")
        a(f"v_max_f32_dpp v{vS1}, v{vS1}, v{vS1} row_ror:8 row_mask:0xf bank_mask:0xf")
        a("s_nop 1")
        a(f"v_max_f32_dpp v{vS1}, v{vS1}, v{vS1} row_bcast:15 row_mask:0xa bank_mask:0xf")
        a("s_nop 1")
        a(f"v_max_f32_dpp v{vS1}, v{vS1}, v{vS1} row_bcast:31 row_mask:0xc bank_mask:0xf")
        a("s_nop 1")
        a(f"v_readlane_b32 s{sT0}, v{vS1}, 63")
        a("s_nop 1")
        a(f"v_min_f32_e64 v{vS1}, -s{sT0}, v{vNEG}")
        a(f"v_sub_f32 v{vS2}, v{vS1}, v{vNEG}")
        a(f"v_exp_f32 v{vS2}, v{vS2}")
        a(f"v_mov_b32 v{vNEG}, v{vS1}")
        for r in range(12):
            a(f"v_mul_f32 v{vACC+r}, v{vACC+r}, v{vS2}")
        a(f"v_mul_f32 v{vL}, v{vL}, v{vS2}")
        a(f"v_fma_f32 v{vP}, v{vS}, s{sC}, v{vNEG}")
        a(f"s_branch BACK_{tag}")

    def ts(self, k):
        if self.o.ts:
            self.e(f"s_memrealtime s[{66+2*k}:{67+2*k}]")
            self.e("s_waitcnt lgkmcnt(0)")

    def hs(self, k):
        if self.o.ts:
            self.e(f"s_memrealtime s[{80+2*k}:{81+2*k}]")

    def stamp(self):
        if self.o.ts:
            e = self.e
            e("s_memrealtime s[76:77]")
            e("s_waitcnt lgkmcnt(0)")
            e("v_mov_b32 v36, s76")
            e(f"ds_write_b32 v{vTS}, v36")
            e(f"v_add_u32 v{vTS}, 4, v{vTS}")

    def fill(self, first, n):
        for j in range(first, first + n):
            for t in range(3):
                self.kv_load("K", RING + 24 * j + 4 * t, t)
            for t in range(3):
                self.kv_load("V", RING + 24 * j + 12 + 4 * t, t)
            self.e(f"s_add_u32 s{sOFF}, s{sOFF}, 3072")

    def masks(self):
        e = self.e
        e("v_and_b32 v13, 1, v10")
        e("v_lshlrev_b32 v13, 4, v13")
        e("v_mov_b32 v14, 0xffff")
        e("v_lshlrev_b32 v13, v13, v14")
        e("v_lshrrev_b32 v14, 1, v10")
        for r in range(4):
            e(f"v_cmp_eq_u32 vcc, {r}, v14")
            e("s_nop 1")
            e(f"v_cndmask_b32 v{vMASK+r}, 0, v13, vcc")

    def claim(self):
        e = self.e
        e(f"s_mov_b32 s{sTK}, 1")
        e(f"s_atomic_add s{sTK}, s[{sCP}:{sCP+1}], 0 glc")

    def top(self, b):
        o = self.o
        e = self.e
        G = 32 // o.groups
        lg = {32: 5, 16: 4, 8: 3}[G]
        e(f"s_add_u32 s{sBASE}, s{sBASE}, {32*CH}")
        e(f"s_cmp_eq_u32 s{sLEFT}, 0")
        e(f"s_cbranch_scc1 NEWR{b}")
        self.lab(f"HAVER{b}")
        e(f"s_sub_u32 s{sLEFT}, s{sLEFT}, 1")
        e(f"s_mov_b32 s{sOFF}, s{sBASE}")
        e(f"s_cmp_lg_u32 s{sLEFT}, 0")
        e(f"s_cbranch_scc1 NOCL{b}")
        self.claim()
        self.lab(f"NOCL{b}")
        S = self.slow
        S.append(f"NEWR{b}:")
        def a(x): S.append("    " + x)
        a("s_waitcnt lgkmcnt(0)")
        a(f"s_add_u32 s{sT0}, s{sTK}, 1")
        a(f"s_cmp_ge_u32 s{sT0}, {len(o.sched) * G}")
        a(f"s_cbranch_scc1 FINAL{b}")
        a(f"s_lshr_b32 s{sT1}, s{sT0}, {lg}")
        a(f"s_and_b32 s{sT0}, s{sT0}, {G-1}")
        if o.groups > 1:
            a(f"s_mul_i32 s{sT0}, s{sT0}, {o.groups}")
            a(f"s_add_u32 s{sT0}, s{sT0}, s{sGRP}")
        a(f"s_lshl_b32 s{sT2}, s{sT1}, 2")
        a(f"s_lshr_b32 s{sLEFT}, s{sSZ}, s{sT2}")
        a(f"s_and_b32 s{sLEFT}, s{sLEFT}, 15")
        a(f"s_lshl_b32 s{sT2}, s{sT1}, 3")
        a(f"s_lshr_b64 s[{sT2}:{sT3}], s[{sPF}:{sPF+1}], s{sT2}")
        a(f"s_and_b32 s{sT2}, s{sT2}, 31")
        a(f"s_lshl_b32 s{sT2}, s{sT2}, 5")
        a(f"s_add_u32 s{sT0}, s{sT0}, s{sT2}")
        a(f"s_mul_i32 s{sBASE}, s{sT0}, {CH}")
        a(f"s_branch HAVER{b}")

    def halves(self, pairs):
        e = self.e
        for a, b in pairs:
            e(f"v_permlane32_swap_b32 v{a}, v{b}")
        e("s_nop 0")
        for a, b in pairs:
            e(f"v_add_f32_dpp v{a}, v{b}, v{a} row_ror:8 row_mask:0xf bank_mask:0xf")

    def loop2(self):
        o = self.o
        e = self.e
        self.lab("LOOP")
        for b in (0, 1):
            self.top(b)
            for j in range(4):
                self.unit(4 * b + j, 45, 45, f"L{b}{j}")
            self.stamp()
        e("s_branch LOOP")
        for b in (1, 0):
            self.lab(f"FINAL{b}")
            for j in range(4):
                self.unit(4 * b + j, 45 - 6 * j, 42 - 6 * j, f"F{b}{j}", refill=False)
            self.stamp()
            for j in range(4):
                self.unit(4 * (1 - b) + j, 21 - 6 * j, 18 - 6 * j, f"G{b}{j}", refill=False)
            self.stamp()
            if b == 1:
                e("s_branch FINDONE")
        self.lab("FINDONE")

    def loop1(self):
        o = self.o
        e = self.e
        self.top("P")
        for j in range(4):
            self.unit(j, 45, 45, f"P{j}")
        self.stamp()
        for j in range(4):
            self.unit(4 + j, 45 - 6 * j, 42 - 6 * j, f"X{j}", refill=False)
        self.stamp()
        self.lab("LOOP")
        self.top("")
        for j in range(4):
            self.unit(j, 21, 21, f"L{j}")
        self.stamp()
        e("s_branch LOOP")
        self.lab("FINALP")
        self.lab("FINAL")
        for j in range(4):
            self.unit(j, 21 - 6 * j, 18 - 6 * j, f"F{j}", refill=False)
        self.stamp()

    def main_kernel(self):
        o = self.o
        e = self.e
        NS = o.ns
        NW = 8 * NS
        e("s_cmp_ge_u32 s2, 256")
        e("s_cbranch_scc1 END0")
        if o.ts:
            e("s_memrealtime s[66:67]")
        e("s_load_dwordx16 s[4:19], s[0:1], 0")
        if o.map == "xcd":
            e(f"s_and_b32 s{sH}, s2, 7")
            e(f"s_lshl_b32 s{sH}, s{sH}, 2")
            e(f"s_lshr_b32 s{sSPLIT}, s2, 3")
            e(f"s_and_b32 s{sSPLIT}, s{sSPLIT}, 3")
            e(f"s_add_u32 s{sH}, s{sH}, s{sSPLIT}")
            e(f"s_lshr_b32 s{sSPLIT}, s2, 5")
        else:
            e(f"s_lshr_b32 s{sH}, s2, 3")
            e(f"s_and_b32 s{sSPLIT}, s2, 7")
        e(f"s_lshl_b32 s{sP}, s{sH}, 3")
        e(f"s_add_u32 s{sP}, s{sP}, s{sSPLIT}")
        e("v_lshrrev_b32 v9, 6, v0")
        e("v_and_b32 v10, 7, v0")
        e(f"v_readfirstlane_b32 s{sW}, v9")
        e("v_bfe_u32 v11, v0, 3, 3")
        e("v_lshlrev_b32 v12, 4, v10")
        e(f"v_mul_u32_u24 v{vKV}, 0x180, v11")
        e(f"v_add_u32 v{vKV}, v{vKV}, v12")
        e(f"s_mul_i32 s{sT2}, s{sH}, {HEADB}")
        e(f"s_mul_i32 s{sBASE}, s{sSPLIT}, {NS}")
        e(f"s_add_u32 s{sBASE}, s{sBASE}, s{sW}")
        e(f"s_sub_u32 s{sBASE}, s{sBASE}, 1")
        e(f"s_mul_i32 s{sBASE}, s{sBASE}, {CH}")
        e(f"s_mov_b32 s{sOFF}, s{sBASE}")
        e(f"s_cmp_eq_u32 s{sW}, 0")
        e("s_cbranch_scc1 HELPER")
        e("s_waitcnt lgkmcnt(0)")
        for d, p in ((sK, 6), (sV, 8)):
            e(f"s_add_u32 s{d}, s{p}, s{sT2}")
            e(f"s_addc_u32 s{d+1}, s{p+1}, 0")
            e(f"s_mov_b32 s{d+2}, {HEADB}")
            e(f"s_mov_b32 s{d+3}, 0x20000")
        if o.hstart:
            e(f"s_sleep {o.hstart}")
        if o.hbar:
            e("s_barrier")
        self.fill(0, 4)
        e(f"s_add_u32 s{sBASE}, s{sBASE}, {NW*CH}")
        e(f"s_mov_b32 s{sOFF}, s{sBASE}")
        self.fill(4, 4)
        self.build_srd(sWS, 18, WS_SIZE if not o.ts else 0x300000)
        self.build_srd(sOUT, 14, 1280)
        self.build_srd(sDBG, 16, 256)
        e(f"s_mov_b32 s{sC}, {f32bits(192 ** -0.5 * math.log2(math.e)):#x}")
        self.masks()
        e(f"s_add_u32 s{sGRP}, s{sW}, s{sSPLIT}")
        e(f"s_and_b32 s{sGRP}, s{sGRP}, {o.groups-1}")
        e(f"s_lshl_b32 s{sCOFF}, s{sH}, {o.cslot}")
        e(f"s_add_u32 s{sCOFF}, s{sCOFF}, s{sGRP}")
        e(f"s_mul_i32 s{sCOFF}, s{sCOFF}, {o.cstride}")
        e(f"s_add_u32 s{sCOFF}, s{sCOFF}, {WS_CNT:#x}")
        e(f"s_add_u32 s{sCP}, s18, s{sCOFF}")
        e(f"s_addc_u32 s{sCP+1}, s19, 0")
        nstat = 32 - sum(o.sched)
        assert nstat >= 3 and len(o.sched) <= 8
        sz = 0; pf = 0; acc = nstat
        for i, n in enumerate(o.sched):
            sz |= n << (4 * i); pf |= acc << (8 * i); acc += n
        e(f"s_mov_b32 s{sSZ}, {sz:#x}")
        e(f"s_mov_b32 s{sPF}, {pf & 0xffffffff:#x}")
        e(f"s_mov_b32 s{sPF+1}, {pf >> 32:#x}")
        e(f"s_mov_b32 s{sLEFT}, {nstat-2}")
        e(f"s_mov_b32 s{sTK}, -2")
        e(f"s_mul_i32 s{sT0}, s{sP}, {BLK}")
        e(f"s_mul_i32 s{sT1}, s{sW}, 768")
        e(f"s_add_u32 s{sT1}, s{sT1}, s{sT0}")
        e(f"s_add_u32 s{sT1}, s{sT1}, {B_O-768}")
        e("v_lshlrev_b32 v13, 5, v10")
        e("v_bfe_u32 v14, v0, 4, 1")
        e("v_lshlrev_b32 v14, 4, v14")
        e(f"v_add3_u32 v13, v13, v14, s{sT1}")
        e("v_bfe_u32 v14, v0, 5, 1")
        e(f"v_lshlrev_b32 v{vST1}, 8, v14")
        e(f"v_add_u32 v{vST1}, v{vST1}, v13")
        e(f"v_lshlrev_b32 v{vST2}, 3, v14")
        e(f"v_add_u32 v{vST2}, v{vST2}, v13")
        e(f"v_add_u32 v{vST2}, 512, v{vST2}")
        e(f"s_lshl_b32 s{sT1}, s{sW}, 3")
        e(f"s_add_u32 s{sT1}, s{sT1}, s{sT0}")
        e(f"s_add_u32 s{sT1}, s{sT1}, {B_ML-8}")
        e(f"v_writelane_b32 v{vST2}, s{sT1}, 63")
        for r in range(12):
            e(f"v_mov_b32 v{vACC+r}, 0")
        e("v_mov_b32 v2, 0")
        e("v_mov_b32 v3, 0x7f800000")
        if o.ts:
            e(f"v_lshlrev_b32 v{vTS}, 2, v0")
            e(f"v_add_u32 v{vTS}, {LDS_TS}, v{vTS}")
            e(f"ds_write_b32 v{vTS}, v2")
            e(f"v_and_b32 v{vTS}, 0xffffff00, v{vTS}")
        e("s_barrier")
        for t in range(3):
            e(f"ds_read_b128 {vr(vQ+4*t,4)}, v12 offset:{QB + t*128}")
        e("s_waitcnt lgkmcnt(0)")
        self.ts(1)
        if o.rb == 2:
            self.loop2()
        else:
            self.loop1()
        self.ts(2)
        e("v_add_f32_dpp v2, v2, v2 row_ror:8 row_mask:0xf bank_mask:0xf")
        e("s_nop 1")
        e("v_add_f32_dpp v2, v2, v2 row_bcast:15 row_mask:0xa bank_mask:0xf")
        e("s_nop 1")
        e("v_add_f32_dpp v2, v2, v2 row_bcast:31 row_mask:0xc bank_mask:0xf")
        e("s_nop 2")
        A = vACC
        self.halves([(A, A+4), (A+1, A+5), (A+2, A+6), (A+3, A+7), (A+8, A+10), (A+9, A+11)])
        e("s_mov_b32 exec_lo, 0x00ff00ff")
        e("s_mov_b32 exec_hi, 0x00ff00ff")
        e(f"buffer_store_dwordx4 {vr(A,4)}, v{vST1}, {srd(sWS)}, 0 offen sc1")
        e("s_mov_b32 exec_lo, 0")
        e("s_mov_b32 exec_hi, 0x80000000")
        e(f"v_mov_b32 v{A+8}, v3")
        e(f"v_mov_b32 v{A+9}, v2")
        e("s_mov_b32 exec_lo, 0x00ff00ff")
        e("s_mov_b32 exec_hi, 0x80ff00ff")
        e(f"buffer_store_dwordx2 {vr(A+8,2)}, v{vST2}, {srd(sWS)}, 0 offen sc1")
        e("s_mov_b64 exec, -1")
        self.ts(3)
        e("s_barrier")
        e(f"s_cmp_lg_u32 s{sW}, 1")
        e("s_cbranch_scc1 END")
        e("s_cmp_ge_u32 s2, 160")
        e("s_cbranch_scc1 END")
        e(f"buffer_load_dword v44, off, {srd(sDBG)}, 0 sc1")
        e(f"s_mov_b32 s{sT0}, {WS_EPOCH:#x}")
        e(f"buffer_load_dword v45, off, {srd(sWS)}, s{sT0} sc1")
        e("v_and_b32 v12, 63, v0")
        e(f"v_mul_u32_u24 v12, {BLK:#x}, v12")
        e(f"s_lshl_b32 s{sT1}, s2, 4")
        e(f"v_add_u32 v12, s{sT1}, v12")
        e(f"s_mov_b32 s{sT1}, {64*BLK}")
        e(f"s_mov_b32 s{sT2}, {128*BLK}")
        e(f"s_mov_b32 s{sT3}, {192*BLK}")
        e(f"s_mov_b32 s{sCNT}, 0")
        e("s_waitcnt vmcnt(0)")
        self.lab("CNT_CHECK")
        e(f"v_readfirstlane_b32 s{sT0}, v44")
        e(f"s_and_b32 s{sT0}, s{sT0}, 255")
        e("s_cbranch_scc0 CNT_OK")
        e(f"s_add_u32 s{sCNT}, s{sCNT}, 1")
        e(f"s_cmp_ge_u32 s{sCNT}, 0x8000")
        e("s_cbranch_scc1 CNT_OK")
        e(f"buffer_load_dword v44, off, {srd(sDBG)}, 0 sc1")
        e("s_waitcnt vmcnt(0)")
        e("s_branch CNT_CHECK")
        self.lab("CNT_OK")
        e(f"s_mov_b32 s{sCNT}, 0")
        self.lab("POLL")
        so = ["0", f"s{sT1}", f"s{sT2}", f"s{sT3}"]
        for k in range(4):
            e(f"buffer_load_dwordx4 {vr(20+4*k,4)}, v12, {srd(sWS)}, {so[k]} offen sc1")
        e(f"s_add_u32 s{sCNT}, s{sCNT}, 1")
        for k in range(4):
            e(f"s_waitcnt vmcnt({3-k})")
            if k == 0:
                e("v_max3_u32 v10, v20, v21, v22")
                e("v_max_u32 v10, v23, v10")
            else:
                e(f"v_max3_u32 v10, v{20+4*k}, v{21+4*k}, v10")
                e(f"v_max3_u32 v10, v{22+4*k}, v{23+4*k}, v10")
        e("v_cmp_eq_u32 vcc, -1, v10")
        e("s_mov_b64 exec, vcc")
        e("s_cbranch_execz POLL_DONE")
        if o.sleep:
            e(f"s_sleep {o.sleep}")
        e(f"s_cmp_lt_u32 s{sCNT}, 0x8000")
        e("s_cbranch_scc1 POLL")
        self.lab("POLL_DONE")
        e("s_mov_b64 exec, -1")
        for r in range(4):
            e(f"v_add_f32 v{20+r}, v{20+r}, v{24+r}")
        for r in range(4):
            e(f"v_add_f32 v{28+r}, v{28+r}, v{32+r}")
        for r in range(4):
            e(f"v_add_f32 v{20+r}, v{20+r}, v{28+r}")
        steps = ["quad_perm:[1,0,3,2] row_mask:0xf", "quad_perm:[2,3,0,1] row_mask:0xf",
                 "row_half_mirror row_mask:0xf", "row_mirror row_mask:0xf",
                 "row_bcast:15 row_mask:0xa", "row_bcast:31 row_mask:0xc"]
        for d in steps:
            for r in range(4):
                e(f"v_add_f32_dpp v{20+r}, v{20+r}, v{20+r} {d} bank_mask:0xf")
        e(f"s_lshl_b32 s{sT1}, s2, 3")
        e("v_cvt_pk_bf16_f32 v20, v20, v21")
        e("v_cvt_pk_bf16_f32 v21, v22, v23")
        e("s_mov_b32 exec_lo, 0")
        e("s_mov_b32 exec_hi, 0x80000000")
        e(f"buffer_store_dwordx2 v[20:21], off, {srd(sOUT)}, s{sT1}")
        e("s_cmp_lg_u32 s2, 0")
        e("s_cbranch_scc1 END")
        e(f"v_add_u32 v45, {TAGC:#x}, v45")
        e(f"s_mov_b32 s{sT0}, {WS_EPOCH:#x}")
        e(f"buffer_store_dword v45, off, {srd(sWS)}, s{sT0} sc1")
        e("s_branch END")
        self.lab("HELPER")
        e(f"s_mul_i32 s{sT0}, s{sSPLIT}, 160")
        e("v_mul_u32_u24 v3, 20, v11")
        e(f"v_add_u32 v3, s{sT0}, v3")
        e(f"s_mul_i32 s{sT0}, s{sSPLIT}, {80*12288}")
        e(f"s_mul_i32 s{sT1}, s{sH}, 384")
        e(f"s_add_u32 s{sT0}, s{sT0}, s{sT1}")
        e(f"s_mov_b32 s{sT1}, {10*12288}")
        e(f"v_mul_lo_u32 v2, v11, s{sT1}")
        e(f"v_add3_u32 v2, v2, v12, s{sT0}")
        e(f"s_mov_b32 s{sT3}, 0")
        e("s_waitcnt lgkmcnt(0)")
        self.hs(0)
        self.build_srd(sX, 4, 1280)
        self.build_srd(sWQ, 10, 640 * 12288)
        e(f"buffer_load_dwordx4 v[4:7], v3, {srd(sX)}, 0 offen")
        e(f"buffer_load_dword v8, v3, {srd(sX)}, 0 offen offset:16")
        for g in range(10):
            for t in range(3):
                off = f" offset:{t*128}" if t else ""
                e(f"buffer_load_dwordx4 {vr(WREG+12*g+4*t,4)}, v2, {srd(sWQ)}, s{sT3} offen{off}{o.wqpol}")
            if g < 9:
                e(f"s_add_u32 s{sT3}, s{sT3}, 12288")
        if o.hbar == 1:
            e("s_barrier")
        self.build_srd(sWS, 18, WS_SIZE if not o.ts else 0x300000)
        e(f"s_mov_b32 s{sT0}, {WS_EPOCH:#x}")
        e(f"buffer_load_dword v40, off, {srd(sWS)}, s{sT0} sc1")
        e(f"s_mul_i32 s{sT0}, s{sP}, {BLK}")
        e(f"s_add_u32 s{sT1}, s{sT0}, 4096")
        e("v_lshlrev_b32 v41, 4, v0")
        for r in range(4):
            e(f"v_mov_b32 v{36+r}, -1")
        for k in range(4):
            offs = f" offset:{k*1024}" if k else ""
            e(f"buffer_store_dwordx4 v[36:39], v41, {srd(sWS)}, s{sT0} offen{offs} sc1")
        e(f"buffer_store_dwordx4 v[36:39], v41, {srd(sWS)}, s{sT1} offen sc1")
        e(f"s_lshl_b32 s{sT2}, s{sH}, {o.cslot}")
        e(f"s_add_u32 s{sT2}, s{sT2}, s{sSPLIT}")
        e(f"s_mul_i32 s{sT2}, s{sT2}, {o.cstride}")
        e(f"s_add_u32 s{sT2}, s{sT2}, {WS_CNT - 1024:#x}")
        e(f"s_sub_u32 s{sT2}, s{sT2}, s{sT1}")
        e(f"v_mov_b32 v43, v41")
        e(f"v_writelane_b32 v43, s{sT2}, 34")
        e(f"s_cmp_lt_u32 s{sSPLIT}, {o.groups}")
        e(f"s_cselect_b32 s{sT2}, 7, 3")
        e(f"s_mov_b32 exec_hi, s{sT2}")
        e(f"buffer_store_dwordx4 v[36:39], v43, {srd(sWS)}, s{sT1} offen offset:1024 sc1")
        e("s_mov_b32 exec_hi, -1")
        if o.hbar == 2:
            e("s_barrier")
        NCL = 7
        self.hs(1)
        self.build_srd(sWO, 12, 6144 * 1280)
        self.build_srd(sDBG, 16, 256)
        e(f"s_mov_b32 s{sSELLO}, 0x01000100")
        e(f"s_mov_b32 s{sSELHI}, 0x03020302")
        self.masks()
        e("v_lshrrev_b32 v42, 4, v0")
        e("v_lshlrev_b32 v42, 7, v42")
        e("v_add_u32 v42, v42, v12")
        e(f"s_mul_i32 s{sT0}, s{sP}, 1536")
        e(f"s_add_u32 s{sT0}, s{sT0}, {WS_QX:#x}")
        e("v_bfe_u32 v43, v0, 3, 1")
        e(f"v_mul_u32_u24 v43, {4*1536:#x}, v43")
        e(f"s_mul_i32 s{sT1}, s{sH}, 12288")
        e(f"s_add_u32 s{sT1}, s{sT1}, {WS_QX:#x}")
        e(f"v_add3_u32 v43, v43, v42, s{sT1}")
        for g in range(10):
            A = vA if g % 2 == 0 else 12
            e(f"s_waitcnt vmcnt({NCL + 3*(9-g)})")
            if g == 0: self.hs(2)
            if g == 9: self.hs(3)
            e(f"v_perm_b32 v9, v{4+g//2}, v{4+g//2}, s{sSELLO if g%2==0 else sSELHI}")
            for r in range(4):
                e(f"v_and_b32 v{A+r}, v9, v{vMASK+r}")
            e("s_nop 1")
            for t in range(3):
                C = "0" if g == 0 else vr(vACC+4*t, 4)
                e(f"v_mfma_f32_16x16x32_bf16 {vr(vACC+4*t,4)}, {vr(A,4)}, {vr(WREG+12*g+4*t,4)}, {C}")
        e("s_waitcnt vmcnt(0)")
        self.hs(4)
        e(f"v_add_u32 v40, {TAGC:#x}, v40")
        e("s_nop 5")
        A = vACC
        self.halves([(A+4*t+r, A+4*t+r+2) for t in range(3) for r in range(2)])
        for t in range(3):
            e(f"v_mov_b32 v{A+4*t+2}, v{A+4*t+1}")
        for t in range(3):
            e(f"v_mov_b32 v{A+4*t+1}, v40")
            e(f"v_mov_b32 v{A+4*t+3}, v40")
        e("s_mov_b32 exec_lo, 0x00ff00ff")
        e("s_mov_b32 exec_hi, 0x00ff00ff")
        for t in range(3):
            offs = f" offset:{t*512}" if t else ""
            e(f"buffer_store_dwordx4 {vr(A+4*t,4)}, v42, {srd(sWS)}, s{sT0} offen{offs} sc1")
        e("s_mov_b64 exec, -1")
        self.hs(5)
        e(f"s_mov_b32 s{sCNT}, 0")
        e(f"s_movk_i32 s{sT2}, 3072")
        self.lab("QPOLL")
        for j in range(4):
            for t in range(3):
                off = (j % 2) * 1536 + t * 512
                offs = f" offset:{off}" if off else ""
                so = "0" if j < 2 else f"s{sT2}"
                e(f"buffer_load_dwordx4 {vr(44+12*j+4*t,4)}, v43, {srd(sWS)}, {so} offen{offs} sc1")
        e(f"s_add_u32 s{sCNT}, s{sCNT}, 1")
        e("v_mov_b32 v7, 0")
        for k in range(12):
            e(f"s_waitcnt vmcnt({11-k})")
            e(f"v_xor_b32 v8, v{44+4*k+1}, v40")
            e(f"v_xor_b32 v9, v{44+4*k+3}, v40")
            e(f"v_or3_b32 v7, v7, v8, v9")
        e("v_cmp_ne_u32 vcc, 0, v7")
        e("s_mov_b64 exec, vcc")
        e("s_cbranch_execz QPOLL_DONE")
        e(f"s_cmp_lt_u32 s{sCNT}, 0x8000")
        e("s_cbranch_scc1 QPOLL")
        self.lab("QPOLL_DONE")
        e("s_mov_b64 exec, -1")
        self.hs(6)
        if o.ts: e(f"s_mov_b32 s94, s{sCNT}")
        for st in (2, 1):
            for j in range(st):
                for q in range(0, 12, 2):
                    e(f"v_add_f32 v{44+12*j+q}, v{44+12*j+q}, v{44+12*(j+st)+q}")
        for q in range(0, 12, 2):
            e(f"v_add_f32_dpp v{44+q}, v{44+q}, v{44+q} row_ror:8 row_mask:0xf bank_mask:0xf")
        e("v_bfe_u32 v4, v0, 4, 1")
        e("v_lshlrev_b32 v4, 3, v4")
        e("v_bfe_u32 v5, v0, 5, 1")
        e("v_lshlrev_b32 v5, 2, v5")
        e("v_and_b32 v6, 7, v0")
        e("v_lshlrev_b32 v6, 4, v6")
        e("v_add3_u32 v4, v4, v5, v6")
        for t in range(3):
            e(f"v_cvt_pk_bf16_f32 v{44+4*t}, v{44+4*t}, v{44+4*t+2}")
        for t in range(3):
            e(f"ds_write_b32 v4, v{44+4*t} offset:{QB + t*128}")
        e("s_waitcnt lgkmcnt(0)")
        e("s_barrier")
        self.ts(1)
        e("s_mov_b64 exec, 1")
        e("v_mov_b32 v10, 1")
        e(f"buffer_atomic_add v10, off, {srd(sDBG)}, 0 sc1")
        e("s_mov_b64 exec, -1")
        if o.wodelay:
            for _ in range(o.wodelay):
                e("s_sleep 127")
        e(f"s_mul_i32 s{sT0}, s{sP}, {24*1280}")
        e("v_lshrrev_b32 v36, 4, v0")
        e(f"v_mul_u32_u24 v36, {6*1280:#x}, v36")
        e("v_and_b32 v37, 15, v0")
        e("v_lshlrev_b32 v37, 4, v37")
        e(f"v_add3_u32 v36, v36, v37, s{sT0}")
        e(f"s_movk_i32 s{sT3}, 3840")
        for g in range(6):
            for c in range(5):
                off = (g % 3) * 1280 + c * 256
                so = "0" if g < 3 else f"s{sT3}"
                offs = f" offset:{off}" if off else ""
                e(f"buffer_load_dwordx4 {vr(WREG+4*(g*5+c),4)}, v36, {srd(sWO)}, {so} offen{offs}{o.wpol}")
        assert NS == 4
        e("v_and_b32 v42, 7, v0")
        e(f"v_mul_u32_u24 v42, {BLK:#x}, v42")
        e(f"s_mul_i32 s{sT0}, s{sH}, {8*BLK}")
        e(f"v_add_u32 v42, s{sT0}, v42")
        e("v_bfe_u32 v37, v0, 3, 1")
        e("v_lshlrev_b32 v43, 4, v37")
        e(f"s_movk_i32 s{sT1}, {B_ML}")
        e(f"v_add3_u32 v43, v43, v42, s{sT1}")
        e(f"v_mul_u32_u24 v37, {1536:#x}, v37")
        e("v_lshrrev_b32 v38, 4, v0")
        e("v_mul_u32_u24 v38, 24, v38")
        e("v_add3_u32 v42, v42, v37, v38")
        e(f"s_mul_i32 s{sT1}, s{sSPLIT}, 96")
        e(f"s_add_u32 s{sT1}, s{sT1}, {B_O}")
        e(f"v_add_u32 v42, s{sT1}, v42")
        e("v_and_b32 v41, 15, v0")
        e("v_lshlrev_b32 v41, 5, v41")
        e("v_bfe_u32 v37, v0, 4, 1")
        e("v_lshlrev_b32 v37, 4, v37")
        e(f"s_mul_i32 s{sT0}, s{sP}, {BLK}")
        e(f"v_add3_u32 v41, v41, v37, s{sT0}")
        e(f"s_mov_b32 s{sCNT}, 0")
        e("s_waitcnt vmcnt(0)")
        e("s_barrier")
        self.ts(2)
        self.lab("OPOLL")
        e(f"buffer_load_dwordx4 v[60:63], v43, {srd(sWS)}, 0 offen sc1")
        e(f"buffer_load_dwordx3 v[44:46], v42, {srd(sWS)}, 0 offen sc1")
        e(f"buffer_load_dwordx3 v[48:50], v42, {srd(sWS)}, 0 offen offset:12 sc1")
        e(f"buffer_load_dwordx3 v[52:54], v42, {srd(sWS)}, 0 offen offset:768 sc1")
        e(f"buffer_load_dwordx3 v[56:58], v42, {srd(sWS)}, 0 offen offset:780 sc1")
        e(f"s_add_u32 s{sCNT}, s{sCNT}, 1")
        e("s_waitcnt vmcnt(4)")
        e("v_max3_u32 v10, v60, v61, v62")
        e("v_max_u32 v10, v63, v10")
        e("s_waitcnt vmcnt(2)")
        e("v_max3_u32 v10, v44, v45, v10")
        e("v_max3_u32 v10, v46, v48, v10")
        e("v_max3_u32 v10, v49, v50, v10")
        e("s_waitcnt vmcnt(0)")
        e("v_max3_u32 v10, v52, v53, v10")
        e("v_max3_u32 v10, v54, v56, v10")
        e("v_max3_u32 v10, v57, v58, v10")
        e("v_cmp_eq_u32 vcc, -1, v10")
        e("s_mov_b64 exec, vcc")
        e("s_cbranch_execz OPOLL_DONE")
        if o.sleep:
            e(f"s_sleep {o.sleep}")
        e(f"s_cmp_lt_u32 s{sCNT}, 0x8000")
        e("s_cbranch_scc1 OPOLL")
        self.lab("OPOLL_DONE")
        e("s_mov_b64 exec, -1")
        e("v_min_f32 v10, v60, v62")
        for d in ALL16:
            e("s_nop 1")
            e(f"v_min_f32_dpp v10, v10, v10 {d} row_mask:0xf bank_mask:0xf")
        e("v_sub_f32 v60, v10, v60")
        e("v_sub_f32 v62, v10, v62")
        e("v_exp_f32 v60, v60")
        e("v_exp_f32 v62, v62")
        oa = [44, 45, 46, 48, 49, 50]
        ob = [52, 53, 54, 56, 57, 58]
        e("v_mul_f32 v61, v61, v60")
        for g in range(6):
            e(f"v_mul_f32 v{oa[g]}, v{oa[g]}, v60")
        e("v_fma_f32 v61, v63, v62, v61")
        for g in range(6):
            e(f"v_fma_f32 v{oa[g]}, v{ob[g]}, v62, v{oa[g]}")
        for i, d in enumerate(ALL16):
            for r in [61] + oa:
                e(f"v_add_f32_dpp v{r}, v{r}, v{r} {d} row_mask:0xf bank_mask:0xf")
                if i == 3 and r == 44:
                    e("v_rcp_f32 v11, v61")
        e("v_fma_f32 v14, -v61, v11, 1.0")
        e("v_fma_f32 v11, v14, v11, v11")
        for g in range(6):
            e(f"v_mul_f32 v{oa[g]}, v{oa[g]}, v11")
        for g in range(6):
            e(f"v_cvt_pk_bf16_f32 v{oa[g]}, v{oa[g]}, v{oa[g]}")
        D = [20, 24, 28, 8, 12]
        AA = [64, 68, 72, 76, 80, 84]
        for r in range(4):
            e(f"v_and_b32 v{AA[0]+r}, v{oa[0]}, v{vMASK+r}")
        for g in range(6):
            if g < 5:
                for r in range(4):
                    e(f"v_and_b32 v{AA[g+1]+r}, v{oa[g+1]}, v{vMASK+r}")
            for c in range(5):
                C = "0" if g == 0 else vr(D[c], 4)
                e(f"v_mfma_f32_16x16x32_bf16 {vr(D[c],4)}, {vr(AA[g],4)}, {vr(WREG+4*(g*5+c),4)}, {C}")
        e("s_mov_b32 exec_hi, 0")
        e("s_nop 2")
        for c in range(5):
            offs = f" offset:{c*512}" if c else ""
            e(f"buffer_store_dwordx4 {vr(D[c],4)}, v41, {srd(sWS)}, 0 offen{offs} sc1")
            if c < 4:
                e("s_nop 0")
        e("s_mov_b64 exec, -1")
        self.ts(3)
        self.lab("END")
        if o.ts:
            self.ts(4)
            e("s_mov_b64 exec, -1")
            e(f"s_mul_i32 s{sT2}, s{sP}, {NS+1}")
            e(f"s_add_u32 s{sT2}, s{sT2}, s{sW}")
            e(f"s_lshl_b32 s{sT3}, s{sT2}, 8")
            e(f"s_add_u32 s{sT3}, s{sT3}, {WS_ST:#x}")
            e("v_lshlrev_b32 v1, 2, v0")
            e(f"ds_read_b32 v2, v1 offset:{LDS_TS}")
            e("v_and_b32 v1, 0xff, v1")
            e("s_waitcnt lgkmcnt(0)")
            e(f"s_cmp_eq_u32 s{sW}, 0")
            e("s_cbranch_scc0 TSW")
            e("v_mov_b32 v2, 0")
            for k in range(8):
                e(f"v_writelane_b32 v2, s{80+2*k}, {k}")
            self.lab("TSW")
            e(f"buffer_store_dword v2, v1, {srd(sWS)}, s{sT3} offen")
            e("s_mov_b64 exec, 1")
            e(f"s_getreg_b32 s{sT0}, hwreg(HW_REG_XCC_ID)")
            e(f"s_getreg_b32 s{sT1}, hwreg(HW_REG_HW_ID)")
            e(f"s_lshl_b32 s{sT2}, s{sT2}, 5")
            e(f"s_add_u32 s{sT2}, s{sT2}, {WS_TS:#x}")
            e(f"v_mov_b32 v1, s{sT2}")
            for k in range(5):
                e(f"v_mov_b32 v{4+k}, s{66+2*k}")
            e(f"v_mov_b32 v9, s{sT0}")
            e(f"v_mov_b32 v10, s{sCNT}")
            e(f"v_mov_b32 v11, s{sW}")
            e(f"buffer_store_dwordx4 v[4:7], v1, {srd(sWS)}, 0 offen")
            e(f"buffer_store_dwordx4 v[8:11], v1, {srd(sWS)}, 0 offen offset:16")
        self.lab("END0")
        e("s_endpgm")
        self.L.extend(self.slow)

    def desc(self, name, vg):
        return f""".amdhsa_kernel {name}
  .amdhsa_next_free_vgpr {vg}
  .amdhsa_next_free_sgpr 100
  .amdhsa_accum_offset {vg}
  .amdhsa_group_segment_fixed_size 0
  .amdhsa_kernarg_size 64
  .amdhsa_user_sgpr_count 2
  .amdhsa_user_sgpr_kernarg_segment_ptr 1
  .amdhsa_system_sgpr_workgroup_id_x 1
  .amdhsa_float_denorm_mode_32 3
.end_amdhsa_kernel
"""

    def build(self):
        o = self.o
        k1 = NAME + "_kernel"
        out = HEADER
        lds = 512 if not o.ts else 512 + 256 * (o.ns + 1)
        out += f"; @launch grid=(256,1,1) block=({64*(o.ns+1)},1,1) lds={lds}\n"
        out += '.amdgcn_target "amdgcn-amd-amdhsa--gfx950"\n.text\n'
        out += f".globl {k1}\n.p2align 8\n.type {k1},@function\n{k1}:\n"
        self.main_kernel()
        out += "\n".join(self.L) + "\n"
        out += '.section .rodata,"a"\n.p2align 6\n'
        out += self.desc(k1, 256)
        return out


def main():
    ap = argparse.ArgumentParser()
    ap.add_argument("-o", default="cdna_kernels/" + NAME + ".s")
    ap.add_argument("--pol", default="nt")
    ap.add_argument("--wpol", default="nt")
    ap.add_argument("--wqpol", default="nt")
    ap.add_argument("--sleep", type=int, default=0)
    ap.add_argument("--ts", action="store_true")
    ap.add_argument("--map", default="spread")
    ap.add_argument("--ns", type=int, default=4)
    ap.add_argument("--static", type=int, default=0)
    ap.add_argument("--rb", type=int, default=2)
    ap.add_argument("--groups", type=int, default=4)
    ap.add_argument("--cstride", type=int, default=256)
    ap.add_argument("--sched", default="8,5,3,2,1,1")
    ap.add_argument("--hbar", type=int, default=2)
    ap.add_argument("--hstart", type=int, default=0)
    ap.add_argument("--wodelay", type=int, default=0)
    o = ap.parse_args()
    o.pol = (" " + o.pol.replace("+", " ")) if o.pol else ""
    o.wpol = (" " + o.wpol.replace("+", " ")) if o.wpol else ""
    o.wqpol = (" " + o.wqpol.replace("+", " ")) if o.wqpol else ""
    o.sched = [int(x) for x in o.sched.split(",")]
    o.cslot = {1: 0, 2: 1, 4: 2}[o.groups]
    assert 32 * o.groups * o.cstride + WS_CNT <= WS_SIZE
    open(o.o, "w").write(Gen(o).build())

main()
```
